```python
import torch

def _softmax(x, axis=-1):
    return torch.softmax(x, dim=axis)
def _gelu(x):
    return torch.nn.functional.gelu(x, approximate="tanh")
def _silu(x):
    return torch.nn.functional.silu(x)
def _sigmoid(x):
    return torch.sigmoid(x)
def _layernorm(x, axis=-1, eps=1e-5):
    m = x.mean(dim=axis, keepdim=True)
    v = x.var(dim=axis, keepdim=True, unbiased=False)
    return (x - m) / torch.sqrt(v + eps)
def _scatter_add(tgt, idx, src, axis=0):
    return tgt.clone().index_add_(axis, idx, src)
def _segment_sum(src, seg, n):
    out = torch.zeros((n,) + src.shape[1:], dtype=src.dtype)
    return out.index_add_(0, seg, src)
def _pad(x, pw):
    flat = tuple(v for pair in reversed(pw) for v in pair)
    return torch.nn.functional.pad(x, flat)

kernel_name = 'standalone__mha_block_cached__decode'

def setup_inputs():

    _w = (lambda a: (lambda t: t.to(torch.bfloat16) if t.is_floating_point() else t)(torch.as_tensor(a)))
    B, Sq, D = 4, 1, 512
    H, Sk, Dh = 32, 4096, 128
    return {
        "x": _w((lambda *s: torch.randn(*s, dtype=torch.bfloat16) * 0.8)(B, Sq, D)),
        "k_cache": _w((lambda *s: torch.randn(*s, dtype=torch.bfloat16) * 0.8)(B, H, Sk, Dh)),
        "v_cache": _w((lambda *s: torch.randn(*s, dtype=torch.bfloat16) * 0.05)(B, H, Sk, Dh)),
        "wq": _w((lambda *s: torch.randn(*s, dtype=torch.bfloat16) * 0.8)(D, H * Dh) * (D ** -0.5)),
        "wo": _w((lambda *s: torch.randn(*s, dtype=torch.bfloat16) * 0.05)(H * Dh, D) * ((H * Dh) ** -0.5)),
    }

def reference(x, k_cache, v_cache, wq, wo):
    B, Sq, D = x.shape
    H, Dh = 32, 128
    q = (lambda x, *d: x.permute(*d))((x @ wq).reshape(B, Sq, H, Dh), 0, 2, 1, 3)
    scores = torch.einsum("bhqd,bhkd->bhqk", q, k_cache) * (Dh ** -0.5)
    p = _softmax(scores, axis=-1)
    o = torch.einsum("bhqk,bhkd->bhqd", p, v_cache)
    return (lambda x, *d: x.permute(*d))(o, 0, 2, 1, 3).reshape(B, Sq, H * Dh) @ wo
```

```python
import re

TRANS = ('v_exp_f32', 'v_log_f32', 'v_rcp_f32', 'v_rsq_f32', 'v_sqrt_f32', 'v_sin_f32', 'v_cos_f32')


def regs_of(op):
    op = op.strip()
    op = op.lstrip('-')
    m = re.match(r'^abs\((.*)\)$', op)
    if m:
        op = m.group(1)
    m = re.match(r'^\|(.*)\|$', op)
    if m:
        op = m.group(1)
    m = re.match(r'^([vsa])(\d+)$', op)
    if m:
        return {op}
    m = re.match(r'^([vsa])\[(\d+):(\d+)\]$', op)
    if m:
        return {f'{m.group(1)}{i}' for i in range(int(m.group(2)), int(m.group(3)) + 1)}
    if op in ('vcc', 'exec', 'm0', 'scc'):
        return {op}
    if op in ('vcc_lo', 'vcc_hi'):
        return {'vcc'}
    if op in ('exec_lo', 'exec_hi'):
        return {'exec'}
    return set()


class Ins:
    __slots__ = ('mn', 'text', 'w', 'r', 'cls', 'dpp', 'srcc', 'srcab', 'states', 'storedata', 'passes')


def split_ops(s):
    out, depth, cur = [], 0, ''
    for ch in s:
        if ch in '[(':
            depth += 1
        if ch in '])':
            depth -= 1
        if ch == ',' and depth == 0:
            out.append(cur.strip())
            cur = ''
        else:
            cur += ch
    if cur.strip():
        out.append(cur.strip())
    return out


def parse(text):
    t = text.split(';')[0].strip()
    parts = t.split(None, 1)
    mn = parts[0]
    rest = parts[1] if len(parts) > 1 else ''
    ins = Ins()
    ins.mn = mn
    ins.text = text
    ins.dpp = ('row_' in rest) or ('quad_perm' in rest) or mn.endswith('_dpp') or ('wave_' in rest)
    ins.srcc = set()
    ins.srcab = set()
    ins.storedata = set()
    ins.states = 1
    ins.passes = 0
    ops = split_ops(rest)
    clean = []
    for o in ops:
        clean.append(o.split()[0] if o else o)
    ops = clean
    base = re.sub(r'_(e32|e64|dpp|sdwa)$', '', mn)
    w, r = set(), set()
    if mn == 's_nop':
        ins.cls = 'nop'
        ins.states = int(ops[0], 0) + 1
    elif mn.startswith('s_'):
        ins.cls = 'salu'
        if mn.startswith(('s_load', 's_buffer_load', 's_memtime', 's_memrealtime')):
            ins.cls = 'smem'
            w |= regs_of(ops[0])
            for o in ops[1:]:
                r |= regs_of(o)
        elif mn.startswith(('s_cmp', 's_cbranch', 's_branch', 's_waitcnt', 's_barrier', 's_endpgm', 's_sleep', 's_setprio', 's_bitcmp')):
            for o in ops:
                r |= regs_of(o)
        else:
            w |= regs_of(ops[0])
            for o in ops[1:]:
                r |= regs_of(o)
            if 'saveexec' in mn:
                w.add('exec')
                r.add('exec')
    elif mn.startswith(('buffer_', 'global_', 'flat_')):
        ins.cls = 'vmem'
        if 'wbl2' in mn or mn.startswith('buffer_inv'):
            pass
        elif '_load' in mn:
            if ' lds' in rest:
                for o in ops:
                    r |= regs_of(o)
            else:
                w |= regs_of(ops[0])
                for o in ops[1:]:
                    r |= regs_of(o)
        elif '_store' in mn:
            for o in ops:
                r |= regs_of(o)
            if mn.endswith(('x3', 'x4')):
                ins.storedata = regs_of(ops[0]) if mn.startswith('buffer') else regs_of(ops[1])
        else:
            for o in ops:
                r |= regs_of(o)
            if ' sc0' in rest:
                w |= regs_of(ops[0])
    elif mn.startswith('ds_'):
        ins.cls = 'ds'
        if mn.startswith(('ds_read', 'ds_bpermute', 'ds_permute', 'ds_swizzle')):
            w |= regs_of(ops[0])
            for o in ops[1:]:
                r |= regs_of(o)
        else:
            for o in ops:
                r |= regs_of(o)
    elif mn.startswith('v_mfma'):
        ins.cls = 'mfma'
        w |= regs_of(ops[0])
        ins.srcab = regs_of(ops[1]) | regs_of(ops[2])
        ins.srcc = regs_of(ops[3])
        r |= ins.srcab | ins.srcc
        ins.passes = 8 if '32x32' in mn else (4 if '16x16' in mn else 2)
    elif mn.startswith('v_'):
        ins.cls = 'valu'
        if base.startswith('v_dot2c'):
            ins.cls = 'dot'
            w |= regs_of(ops[0])
            ins.srcc = regs_of(ops[0])
            ins.srcab = regs_of(ops[1]) | regs_of(ops[2])
            r |= ins.srcc | ins.srcab
        elif base.startswith('v_dot'):
            ins.cls = 'dot'
            w |= regs_of(ops[0])
            ins.srcab = regs_of(ops[1]) | regs_of(ops[2])
            ins.srcc = regs_of(ops[3])
            r |= ins.srcc | ins.srcab
        elif base.startswith('v_permlane') and 'swap' in base:
            ins.cls = 'plswap'
            w |= regs_of(ops[0]) | regs_of(ops[1])
            r |= regs_of(ops[0]) | regs_of(ops[1])
        elif base.startswith('v_cmpx'):
            w |= regs_of(ops[0]) | {'exec'}
            for o in ops[1:]:
                r |= regs_of(o)
        elif base.startswith('v_cmp'):
            w |= regs_of(ops[0])
            for o in ops[1:]:
                r |= regs_of(o)
        elif base in ('v_add_co_u32', 'v_sub_co_u32', 'v_addc_co_u32', 'v_subb_co_u32'):
            w |= regs_of(ops[0]) | regs_of(ops[1])
            for o in ops[2:]:
                r |= regs_of(o)
        elif base in ('v_fmac_f32', 'v_pk_fmac_f16'):
            w |= regs_of(ops[0])
            for o in ops:
                r |= regs_of(o)
        else:
            w |= regs_of(ops[0])
            for o in ops[1:]:
                r |= regs_of(o)
            if base == 'v_cndmask_b32' and len(ops) == 3:
                r.add('vcc')
            if ins.dpp and ('bank_mask' in rest or 'row_mask' in rest):
                r |= regs_of(ops[0])
        if base in TRANS:
            ins.cls = 'trans'
        if base in ('v_readfirstlane_b32', 'v_readlane_b32'):
            ins.cls = 'readlane'
    else:
        raise ValueError('unknown instruction ' + text)
    ins.w, ins.r = w, r
    ins.mn = base
    return ins


VALU_CLS = ('valu', 'dot', 'trans', 'plswap', 'readlane')


def need(p, c):
    n = 0
    pv = p.cls in VALU_CLS
    cv = c.cls in VALU_CLS
    vw = {x for x in p.w if x[0] in 'va' and x not in ('vcc',)}
    sw = {x for x in p.w if x[0] == 's' or x == 'vcc'}
    if pv:
        if c.dpp and (vw & c.r):
            n = max(n, 2)
        if c.cls == 'plswap' and (vw & c.r):
            n = max(n, 2)
        if c.cls == 'readlane' and (vw & c.r):
            n = max(n, 1)
        if c.cls == 'mfma' and (vw & c.r):
            n = max(n, 2)
        if sw & c.r:
            if c.cls == 'vmem':
                n = max(n, 5)
            elif c.cls == 'readlane' or c.mn == 'v_writelane_b32':
                n = max(n, 4)
            elif cv:
                n = max(n, 2)
            elif c.cls in ('salu', 'smem'):
                n = max(n, 2)
        if 'exec' in p.w:
            if c.dpp:
                n = max(n, 5)
            elif c.cls in ('readlane', 'plswap', 'mfma'):
                n = max(n, 4)
            elif cv:
                n = max(n, 2)
    if p.cls == 'trans' and c.cls != 'trans' and (vw & c.r):
        n = max(n, 1)
    if p.cls == 'dot':
        if c.cls == 'dot' and c.mn == p.mn:
            if vw & c.srcab:
                n = max(n, 3)
        elif vw & (c.r | c.w):
            n = max(n, 3)
    if p.cls == 'plswap' and (vw & c.r) and (cv or c.cls in ('ds', 'vmem')):
        n = max(n, 1)
    if p.storedata and (p.storedata & c.w):
        n = max(n, 2)
    if p.cls == 'mfma':
        tab_ab = {2: 5, 4: 8, 8: 12, 16: 20}[p.passes]
        tab_c = {2: 4, 4: 6, 8: 10, 16: 18}[p.passes]
        if c.cls == 'mfma':
            if vw & c.srcab:
                n = max(n, tab_ab)
            if vw & c.srcc:
                if c.srcc == vw and c.passes == p.passes:
                    n = max(n, 2 if p.passes == 2 else 0)
                else:
                    n = max(n, tab_c)
        elif vw & (c.r | c.w):
            n = max(n, tab_ab)
        if cv and (p.srcc & c.w):
            n = max(n, {2: 1, 4: 3, 8: 7, 16: 15}[p.passes])
    if p.cls == 'salu' and 'm0' in p.w and c.cls == 'vmem' and ' lds' in c.text:
        n = max(n, 1)
    return n


def maxneed(p):
    if p.cls == 'mfma':
        return {2: 5, 4: 8, 8: 12, 16: 20}[p.passes]
    n = 0
    if p.cls in VALU_CLS:
        n = 2
        if any(x[0] == 's' or x in ('vcc', 'exec') for x in p.w):
            n = 5
        if p.cls == 'dot':
            n = max(n, 3)
    if p.storedata:
        n = max(n, 2)
    if p.cls == 'salu' and 'm0' in p.w:
        n = 1
    return n


class Asm:
    def __init__(self):
        self.lines = []
        self.hist = []
        self.nops = 0

    def raw(self, text):
        self.lines.append(text)

    def comment(self, text):
        self.lines.append('    ; ' + text)

    def _pad(self, k):
        while k > 0:
            n = min(k, 16)
            self.lines.append(f'    s_nop {n - 1}')
            ins = parse(f's_nop {n - 1}')
            self.hist.append(ins)
            self.nops += 1
            k -= n

    def __call__(self, text):
        for line in text.strip().split('\n'):
            line = line.strip()
            if not line or line.startswith(';'):
                if line:
                    self.lines.append('    ' + line)
                continue
            self._emit(line)

    def _emit(self, text):
        c = parse(text)
        is_branch = c.mn.startswith(('s_cbranch', 's_branch', 's_endpgm', 's_setpc', 's_swappc'))
        dist = 0
        k = 0
        for p in reversed(self.hist[-24:]):
            req = maxneed(p) if is_branch else need(p, c)
            if is_branch:
                req -= 1
            if req - dist > k:
                k = req - dist
            dist += p.states
            if dist > 24:
                break
        if k > 0:
            self._pad(k)
        self.lines.append('    ' + text)
        self.hist.append(c)
        if len(self.hist) > 64:
            self.hist = self.hist[-32:]

    def flush(self):
        dist = 0
        k = 0
        for p in reversed(self.hist[-24:]):
            req = maxneed(p)
            if req - dist > k:
                k = req - dist
            dist += p.states
        if k > 0:
            self._pad(k)

    def label(self, name):
        self.flush()
        self.lines.append(f'{name}:')
        self.hist = []

    def text(self):
        return '\n'.join(self.lines) + '\n'
```

```python
import sys, math, struct
sys.path.insert(0, 'gen')
from asmdsl import Asm

NAME = 'standalone__mha_block_cached__decode'


def f32bits(x):
    return struct.unpack('<I', struct.pack('<f', x))[0]


HEADER = open('cdna_kernels/%s.s.ref' % NAME).read().split('; Override launch')[0]


def gen(NB=8, nt=True, fused=False):
    NW = 8
    CH = 512 * 1024
    STEP = NW * NB * 1024
    NIT = CH // STEP
    assert NIT % 2 == 0
    C = (128 ** -0.5) * math.log2(math.e)
    NTS = ' nt' if nt else ''
    a = Asm()
    sX, sK, sV, sWQ, sWO, sOUT, sDBG, sWS = 4, 6, 8, 10, 12, 14, 16, 18
    rK, rV, rWQ, rWO, rX, rWS = 20, 24, 28, 32, 36, 40
    sW, sH, sB, sS, sT0, sT1, sC, sIT, sOFF, sOFF2, sHS = 44, 45, 46, 47, 48, 49, 50, 51, 52, 53, 54
    vL = 0
    vG, vCc = 1, 2
    vKV0, vKV1 = 3, 4
    vT0, vT1, vT2, vT3 = 5, 6, 7, 8
    vM, vLs, vAl, vNM = 9, 10, 11, 12
    vWOa = 13
    vQ = 16
    vACC = 20
    vSC = 28
    vPL = 36
    vPH = 44
    vXr = 28
    vXA, vXB = 36, 37
    vW = 52
    vKB = 120
    vVB = vKB + 2 * NB * 4
    vEND = vVB + 2 * NB * 4
    assert vEND <= 256, vEND

    def v(i, n=1):
        return f'v{i}' if n == 1 else f'v[{i}:{i + n - 1}]'

    def s(i, n=1):
        return f's{i}' if n == 1 else f's[{i}:{i + n - 1}]'

    K1 = 'attn_kernel'
    a.raw(f'.globl {K1}\n.p2align 8\n.type {K1},@function\n{K1}:')
    a(f'''
    s_cmp_ge_u32 s2, 256
    s_cbranch_scc1 L_end1
    s_load_dwordx16 s[4:19], s[0:1], 0
    v_lshrrev_b32 v{vT0}, 6, v0
    v_and_b32 v{vL}, 63, v0
    v_readfirstlane_b32 s{sW}, v{vT0}
    s_and_b32 s{sH}, s2, 7
    s_lshr_b32 s{sT0}, s2, 3
    s_lshr_b32 s{sT1}, s{sT0}, 3
    s_lshl_b32 s{sH}, s{sH}, 2
    s_add_u32 s{sH}, s{sH}, s{sT1}
    s_and_b32 s{sT0}, s{sT0}, 7
    s_lshr_b32 s{sB}, s{sT0}, 1
    s_and_b32 s{sS}, s{sT0}, 1
    s_mov_b32 s{sC}, {f32bits(C):#x}
    v_lshrrev_b32 v{vG}, 4, v{vL}
    v_and_b32 v{vCc}, 15, v{vL}
    ''')
    a(f'''
    s_lshl_b32 s{sT0}, s{sW}, 7
    v_lshlrev_b32 v{vT0}, 5, v{vG}
    v_add_u32 v{vT0}, s{sT0}, v{vT0}
    v_lshlrev_b32 v{vT1}, 12, v{vT0}
    v_lshlrev_b32 v{vT2}, 4, v{vCc}
    v_add_u32 v{vT1}, v{vT1}, v{vT2}
    ''')
    a(f'''
    s_mul_i32 s{sT0}, s{sW}, {NB * 1024}
    v_lshlrev_b32 v{vKV0}, 4, v{vL}
    v_add_u32 v{vKV0}, s{sT0}, v{vKV0}
    v_add_u32 v{vKV1}, 0x1000, v{vKV0}
    ''')
    a(f'''
    v_lshrrev_b32 v{vT2}, 3, v{vL}
    v_lshlrev_b32 v{vT2}, 14, v{vT2}
    v_and_b32 v{vT3}, 7, v{vL}
    v_lshlrev_b32 v{vT3}, 4, v{vT3}
    s_lshl_b32 s{sT0}, s{sW}, 7
    v_add3_u32 v{vWOa}, v{vT2}, v{vT3}, s{sT0}
    ''')
    a(f'''
    s_lshl_b32 s{sT0}, s{sB}, 5
    s_add_u32 s{sT0}, s{sT0}, s{sH}
    s_lshl_b32 s{sHS}, s{sT0}, 1
    s_add_u32 s{sHS}, s{sHS}, s{sS}
    s_lshl_b32 s{sT0}, s{sHS}, 19
    s_waitcnt lgkmcnt(0)
    s_lshl_b32 s{sT1}, s{sB}, 10
    s_add_u32 s{rX}, s{sX}, s{sT1}
    s_addc_u32 s{rX + 1}, s{sX + 1}, 0
    s_mov_b32 s{rX + 2}, 1024
    s_mov_b32 s{rX + 3}, 0x20000
    s_lshl_b32 s{sT1}, s{sH}, 8
    s_add_u32 s{rWQ}, s{sWQ}, s{sT1}
    s_addc_u32 s{rWQ + 1}, s{sWQ + 1}, 0
    s_sub_u32 s{rWQ + 2}, 0x400000, s{sT1}
    s_mov_b32 s{rWQ + 3}, 0x20000
    buffer_load_dwordx4 {v(vXr, 4)}, v{vT0}, {s(rX, 4)}, 0 offen
    buffer_load_dwordx4 {v(vXr + 4, 4)}, v{vT0}, {s(rX, 4)}, 0 offen offset:16
    s_mov_b32 s{sOFF}, 0
    ''')
    for i in range(16):
        a(f'buffer_load_dwordx4 {v(vW + 4 * i, 4)}, v{vT1}, {s(rWQ, 4)}, s{sOFF} offen')
        if i < 15:
            a(f's_add_u32 s{sOFF}, s{sOFF}, 0x2000')
    a(f'''
    s_add_u32 s{rK}, s{sK}, s{sT0}
    s_addc_u32 s{rK + 1}, s{sK + 1}, 0
    s_mov_b32 s{rK + 2}, {CH:#x}
    s_mov_b32 s{rK + 3}, 0x20000
    s_add_u32 s{rV}, s{sV}, s{sT0}
    s_addc_u32 s{rV + 1}, s{sV + 1}, 0
    s_mov_b32 s{rV + 2}, {CH:#x}
    s_mov_b32 s{rV + 3}, 0x20000
    s_lshl_b32 s{sT1}, s{sH}, 17
    s_add_u32 s{rWO}, s{sWO}, s{sT1}
    s_addc_u32 s{rWO + 1}, s{sWO + 1}, 0
    s_mov_b32 s{rWO + 2}, 0x20000
    s_mov_b32 s{rWO + 3}, 0x20000
    s_mov_b32 s{rWS}, s{sWS}
    s_mov_b32 s{rWS + 1}, s{sWS + 1}
    s_mov_b32 s{rWS + 2}, 0x100000
    s_mov_b32 s{rWS + 3}, 0x20000
    s_barrier
    ''')

    def issue(rsrc, vbuf, soff):
        for j in range(NB):
            vo = vKV0 if j < 4 else vKV1
            a(f'buffer_load_dwordx4 {v(vbuf + 4 * j, 4)}, v{vo}, {s(rsrc, 4)}, s{soff} offen offset:{(j & 3) * 1024}{NTS}')

    a(f's_mov_b32 s{sOFF}, 0')
    a(f's_mov_b32 s{sOFF2}, {STEP}')
    issue(rK, vKB, sOFF)
    issue(rV, vVB, sOFF)
    issue(rK, vKB + 4 * NB, sOFF2)
    issue(rV, vVB + 4 * NB, sOFF2)
    for k in range(8):
        a(f'v_mov_b32 v{vACC + k}, 0')
    a(f's_waitcnt vmcnt({4 * NB})')
    for i in range(16):
        xr = vXr + i // 2
        xa, xb = vXA + 2 * (i & 1), vXB + 2 * (i & 1)
        if i & 1 == 0:
            a(f'v_and_b32 v{xa}, 0xffff, v{xr}')
            a(f'v_lshlrev_b32 v{xb}, 16, v{xr}')
        else:
            a(f'v_lshrrev_b32 v{xa}, 16, v{xr}')
            a(f'v_and_b32 v{xb}, 0xffff0000, v{xr}')
        for k in range(4):
            a(f'v_dot2c_f32_bf16 v{vACC + 2 * k}, v{vW + 4 * i + k}, v{xa}')
            a(f'v_dot2c_f32_bf16 v{vACC + 2 * k + 1}, v{vW + 4 * i + k}, v{xb}')
    for t in range(16):
        if t % 4 == 0:
            a(f's_mov_b32 s{sT0}, {t * 1024}')
        a(f'buffer_load_dwordx4 {v(vW + 4 * t, 4)}, v{vWOa}, {s(rWO, 4)}, s{sT0} offen offset:{(t & 3) * 1024}')

    def rows_reduce8(base):
        for k in range(4):
            a(f'v_permlane32_swap_b32 v{base + k}, v{base + k + 4}')
        for k in range(4):
            a(f'v_add_f32 v{base + k}, v{base + k}, v{base + k + 4}')
        for k in range(2):
            a(f'v_permlane16_swap_b32 v{base + k}, v{base + k + 2}')
        for k in range(2):
            a(f'v_add_f32 v{base + k}, v{base + k}, v{base + k + 2}')

    rows_reduce8(vACC)
    vLW, vLR, vPW, vPR = vT0, vT1, vT2, vT3
    a(f'''
    v_lshlrev_b32 v{vLW}, 5, v{vCc}
    v_lshl_add_u32 v{vLW}, v{vG}, 3, v{vLW}
    s_lshl_b32 s{sT0}, s{sW}, 9
    v_add_u32 v{vLW}, s{sT0}, v{vLW}
    v_lshlrev_b32 v{vLR}, 3, v{vL}
    s_lshl_b32 s{sT0}, s{sW}, 8
    s_add_u32 s{sT0}, s{sT0}, 8448
    v_lshlrev_b32 v{vPW}, 2, v{vL}
    v_add_u32 v{vPW}, s{sT0}, v{vPW}
    v_lshlrev_b32 v{vPR}, 4, v{vCc}
    v_add_u32 v{vPR}, s{sT0}, v{vPR}
    ds_write_b64 v{vLW}, {v(vACC, 2)}
    s_waitcnt lgkmcnt(0)
    s_barrier
    ''')
    for w in range(8):
        a(f'ds_read_b64 {v(vSC + 2 * w, 2)}, v{vLR} offset:{w * 512}')
    a('s_waitcnt lgkmcnt(0)')
    for st in (4, 2, 1):
        for w in range(st):
            for e in range(2):
                a(f'v_add_f32 v{vSC + 2 * w + e}, v{vSC + 2 * w + e}, v{vSC + 2 * (w + st) + e}')
    a(f'''
    v_cvt_pk_bf16_f32 v{vSC}, v{vSC}, v{vSC + 1}
    ds_write_b32 v{vPW}, v{vSC}
    s_waitcnt lgkmcnt(0)
    ds_read_b128 {v(vQ, 4)}, v{vPR}
    ''')
    for k in range(8):
        a(f'v_mov_b32 v{vACC + k}, 0')
    a(f'''
    v_mov_b32 v{vM}, 0xff800000
    v_mov_b32 v{vLs}, 0
    s_mov_b32 s{sIT}, 0
    s_mov_b32 s{sOFF}, {2 * STEP}
    s_waitcnt lgkmcnt(0)
    ''')

    def wait_vm(tag):
        a(f'''
        s_cmp_eq_u32 s{sIT}, 0
        s_cbranch_scc1 L_w1_{tag}
        s_waitcnt vmcnt({3 * NB})
        ''')
        a.label(f'L_w1_{tag}')
        a(f's_waitcnt vmcnt({3 * NB + 16})')

    def batch(buf, tag):
        kb = vKB + buf * 4 * NB
        vb = vVB + buf * 4 * NB
        wait_vm(tag + 'k')
        for j in range(NB):
            a(f'v_dot2_f32_bf16 v{vSC + j}, v{kb + 4 * j}, v{vQ}, 0')
        for k in range(1, 4):
            for j in range(NB):
                a(f'v_dot2c_f32_bf16 v{vSC + j}, v{kb + 4 * j + k}, v{vQ + k}')
        issue(rK, kb, sOFF)
        for r in (8, 4, 2, 1):
            for j in range(NB):
                a(f'v_add_f32_dpp v{vSC + j}, v{vSC + j}, v{vSC + j} row_ror:{r} row_mask:0xf bank_mask:0xf')
        vals = [vM] + [vSC + j for j in range(NB)]
        cur = vals[0]
        rest = vals[1:]
        first = True
        while rest:
            if len(rest) >= 2:
                a(f'v_max3_f32 v{vNM}, v{cur}, v{rest[0]}, v{rest[1]}')
                rest = rest[2:]
            else:
                a(f'v_max_f32 v{vNM}, v{cur}, v{rest[0]}')
                rest = rest[1:]
            cur = vNM
        a(f'''
        v_sub_f32 v{vAl}, v{vM}, v{vNM}
        v_mov_b32 v{vM}, v{vNM}
        v_mul_f32 v{vAl}, s{sC}, v{vAl}
        v_mul_f32 v{vNM}, s{sC}, v{vNM}
        v_exp_f32 v{vAl}, v{vAl}
        ''')
        for j in range(NB):
            a(f'v_fma_f32 v{vSC + j}, v{vSC + j}, s{sC}, -v{vNM}')
        for j in range(NB):
            a(f'v_exp_f32 v{vSC + j}, v{vSC + j}')
        a(f'v_mul_f32 v{vLs}, v{vLs}, v{vAl}')
        for k in range(8):
            a(f'v_mul_f32 v{vACC + k}, v{vACC + k}, v{vAl}')
        for j in range(NB):
            a(f'v_cvt_pk_bf16_f32 v{vPL + j}, v{vSC + j}, 0')
        for j in range(NB):
            a(f'v_lshlrev_b32 v{vPH + j}, 16, v{vPL + j}')
        for j in range(NB):
            a(f'v_add_f32 v{vLs}, v{vLs}, v{vSC + j}')
        wait_vm(tag + 'v')
        for j in range(NB):
            for k in range(4):
                a(f'v_dot2c_f32_bf16 v{vACC + 2 * k}, v{vb + 4 * j + k}, v{vPL + j}')
                a(f'v_dot2c_f32_bf16 v{vACC + 2 * k + 1}, v{vb + 4 * j + k}, v{vPH + j}')
        issue(rV, vb, sOFF)
        a(f's_add_u32 s{sOFF}, s{sOFF}, {STEP}')

    a.label('L_loop')
    batch(0, 'a')
    batch(1, 'b')
    a(f'''
    s_cmp_lg_u32 s{sIT}, 1
    s_cbranch_scc1 L_noperm
    s_mov_b32 s{sT0}, 0x05040100
    s_mov_b32 s{sT1}, 0x07060302
    ''')
    wmap = {}
    free = vW + 64
    for j in range(8):
        for k in range(4):
            A, B = vW + 8 * j + k, vW + 8 * j + 4 + k
            a(f'v_perm_b32 v{free}, v{B}, v{A}, s{sT0}')
            a(f'v_perm_b32 v{B}, v{B}, v{A}, s{sT1}')
            wmap[(j, 2 * k)] = free
            wmap[(j, 2 * k + 1)] = B
            free = A
    a.label('L_noperm')
    a(f'''
    s_add_u32 s{sIT}, s{sIT}, 1
    s_cmp_lt_u32 s{sIT}, {NIT // 2}
    s_cbranch_scc1 L_loop
    ''')
    t0, t1 = vSC, vSC + 1
    a(f'''
    v_mov_b32 v{t0}, v{vM}
    v_mov_b32 v{t1}, v{vM}
    v_permlane32_swap_b32 v{t0}, v{t1}
    v_max_f32 v{t0}, v{t0}, v{t1}
    v_mov_b32 v{t1}, v{t0}
    v_permlane16_swap_b32 v{t0}, v{t1}
    v_max_f32 v{vNM}, v{t0}, v{t1}
    v_sub_f32 v{vAl}, v{vM}, v{vNM}
    v_mul_f32 v{vAl}, s{sC}, v{vAl}
    v_exp_f32 v{vAl}, v{vAl}
    ''')
    a(f'v_mul_f32 v{vLs}, v{vLs}, v{vAl}')
    for k in range(8):
        a(f'v_mul_f32 v{vACC + k}, v{vACC + k}, v{vAl}')
    a(f'''
    v_mov_b32 v{t1}, v{vLs}
    v_permlane32_swap_b32 v{vLs}, v{t1}
    v_add_f32 v{vLs}, v{vLs}, v{t1}
    v_mov_b32 v{t1}, v{vLs}
    v_permlane16_swap_b32 v{vLs}, v{t1}
    v_add_f32 v{t1}, v{vLs}, v{t1}
    v_mov_b32 v{t0}, v{vNM}
    ''')
    rows_reduce8(vACC)
    a(f'''
    s_lshl_b32 s{sT0}, s{sW}, 3
    s_add_u32 s{sT0}, s{sT0}, 8192
    v_mov_b32 v{vAl}, s{sT0}
    ds_write_b64 v{vLW}, {v(vACC, 2)} offset:4096
    ds_write_b64 v{vAl}, {v(t0, 2)}
    v_mov_b32 v{vAl}, 0x2000
    s_waitcnt lgkmcnt(0)
    s_barrier
    s_waitcnt vmcnt(0)
    ''')
    vML = vKB
    vOP = vKB + 16
    for i in range(4):
        a(f'ds_read_b128 {v(vML + 4 * i, 4)}, v{vAl} offset:{16 * i}')
    for w in range(8):
        a(f'ds_read_b64 {v(vOP + 2 * w, 2)}, v{vLR} offset:{4096 + w * 512}')
    a('s_waitcnt lgkmcnt(8)')
    a(f'''
    v_max3_f32 v{vNM}, v{vML}, v{vML + 2}, v{vML + 4}
    v_max3_f32 v{vNM}, v{vNM}, v{vML + 6}, v{vML + 8}
    v_max3_f32 v{vNM}, v{vNM}, v{vML + 10}, v{vML + 12}
    v_max_f32 v{vNM}, v{vNM}, v{vML + 14}
    v_mul_f32 v{vM}, s{sC}, v{vNM}
    ''')
    for w in range(8):
        a(f'v_fma_f32 v{vML + 2 * w}, v{vML + 2 * w}, s{sC}, -v{vM}')
    for w in range(8):
        a(f'v_exp_f32 v{vML + 2 * w}, v{vML + 2 * w}')
    a(f'v_mul_f32 v{vLs}, v{vML}, v{vML + 1}')
    for w in range(1, 8):
        a(f'v_fmac_f32 v{vLs}, v{vML + 2 * w}, v{vML + 2 * w + 1}')
    a('s_waitcnt lgkmcnt(0)')
    a(f'v_mul_f32 v{t0}, v{vML}, v{vOP}')
    a(f'v_mul_f32 v{t1}, v{vML}, v{vOP + 1}')
    for w in range(1, 8):
        a(f'v_fmac_f32 v{t0}, v{vML + 2 * w}, v{vOP + 2 * w}')
        a(f'v_fmac_f32 v{t1}, v{vML + 2 * w}, v{vOP + 2 * w + 1}')
    vOB = vKB + 32
    a(f'''
    v_cvt_pk_bf16_f32 v{t0}, v{t0}, v{t1}
    ds_write_b32 v{vPW}, v{t0}
    v_lshrrev_b32 v{vAl}, 3, v{vL}
    v_lshlrev_b32 v{vAl}, 5, v{vAl}
    s_lshl_b32 s{sT0}, s{sW}, 8
    s_add_u32 s{sT0}, s{sT0}, 8448
    v_add_u32 v{vAl}, s{sT0}, v{vAl}
    s_waitcnt lgkmcnt(0)
    ds_read_b128 {v(vOB, 4)}, v{vAl}
    ds_read_b128 {v(vOB + 4, 4)}, v{vAl} offset:16
    s_waitcnt lgkmcnt(0)
    ''')
    vY = vACC
    for n in range(8):
        a(f'v_dot2_f32_bf16 v{vY + n}, v{wmap[(0, n)]}, v{vOB}, 0')
    for j in range(1, 8):
        for n in range(8):
            a(f'v_dot2c_f32_bf16 v{vY + n}, v{wmap[(j, n)]}, v{vOB + j}')
    for k in range(4):
        a(f'v_permlane32_swap_b32 v{vY + k}, v{vY + k + 4}')
    for k in range(4):
        a(f'v_add_f32 v{vY + k}, v{vY + k}, v{vY + k + 4}')
    for k in range(4):
        a(f'v_mov_b32 v{vY + 4 + k}, v{vY + k}')
    for k in range(4):
        a(f'v_permlane16_swap_b32 v{vY + k}, v{vY + k + 4}')
    for k in range(4):
        a(f'v_add_f32 v{vY + k}, v{vY + k}, v{vY + k + 4}')
    for k in range(4):
        a(f'v_add_f32_dpp v{vY + k}, v{vY + k}, v{vY + k} row_ror:8 row_mask:0xf bank_mask:0xf')
    a(f'''
    v_and_b32 v{t0}, 7, v{vL}
    v_lshlrev_b32 v{t0}, 5, v{t0}
    v_lshrrev_b32 v{t1}, 5, v{vL}
    v_lshl_add_u32 v{t0}, v{t1}, 4, v{t0}
    s_lshl_b32 s{sT0}, s{sHS}, 11
    s_lshl_b32 s{sT1}, s{sW}, 8
    s_add_u32 s{sT0}, s{sT0}, s{sT1}
    s_mov_b32 exec_lo, 0xff
    s_mov_b32 exec_hi, 0xff
    buffer_store_dwordx4 {v(vY, 4)}, v{t0}, {s(rWS, 4)}, s{sT0} offen
    s_cmp_lg_u32 s{sW}, 0
    s_cbranch_scc1 L_end1
    s_mov_b64 exec, 1
    v_mov_b32 v{t0}, v{vM}
    v_mov_b32 v{t1}, v{vLs}
    v_mov_b32 v{vAl}, 0
    s_lshl_b32 s{sT0}, s{sHS}, 3
    s_add_u32 s{sT0}, s{sT0}, 0x80000
    buffer_store_dwordx2 {v(t0, 2)}, v{vAl}, {s(rWS, 4)}, s{sT0} offen
    ''')
    a.label('L_end1')
    a('s_endpgm')

    K2 = 'final_kernel'
    a.raw(f'.globl {K2}\n.p2align 8\n.type {K2},@function\n{K2}:')
    a.hist = []
    a(f'''
    s_cmp_ge_u32 s2, 256
    s_cbranch_scc1 L_end2
    s_load_dwordx2 s[4:5], s[0:1], 40
    s_load_dwordx2 s[8:9], s[0:1], 56
    s_lshr_b32 s12, s2, 6
    s_and_b32 s13, s2, 63
    v_lshlrev_b32 v1, 11, v0
    v_lshlrev_b32 v2, 3, v0
    s_lshl_b32 s14, s12, 17
    s_lshl_b32 s15, s13, 5
    s_add_u32 s14, s14, s15
    s_lshl_b32 s15, s12, 9
    s_add_u32 s15, s15, 0x80000
    s_mov_b32 s6, 4096
    s_mov_b32 s7, 0x20000
    s_mov_b32 s10, 0x100000
    s_mov_b32 s11, 0x20000
    s_waitcnt lgkmcnt(0)
    buffer_load_dwordx2 v[4:5], v2, s[8:11], s15 offen
    buffer_load_dwordx4 v[8:11], v1, s[8:11], s14 offen
    buffer_load_dwordx4 v[12:15], v1, s[8:11], s14 offen offset:16
    s_waitcnt vmcnt(2)
    v_max_f32_dpp v6, v4, v4 quad_perm:[1,0,3,2] row_mask:0xf bank_mask:0xf
    v_sub_f32 v6, v4, v6
    v_exp_f32 v6, v6
    v_mul_f32 v5, v5, v6
    v_add_f32_dpp v7, v5, v5 quad_perm:[1,0,3,2] row_mask:0xf bank_mask:0xf
    v_rcp_f32 v7, v7
    v_mul_f32 v6, v6, v7
    s_waitcnt vmcnt(0)
    ''')
    for k in range(8):
        a(f'v_mul_f32 v{8 + k}, v{8 + k}, v6')
    for k in range(4):
        a(f'v_permlane32_swap_b32 v{8 + k}, v{12 + k}')
    for k in range(4):
        a(f'v_add_f32 v{8 + k}, v{8 + k}, v{12 + k}')
    for k in range(2):
        a(f'v_permlane16_swap_b32 v{8 + k}, v{10 + k}')
    for k in range(2):
        a(f'v_add_f32 v{8 + k}, v{8 + k}, v{10 + k}')
    a(f'''
    v_add_f32_dpp v10, v8, v8 row_ror:8 row_mask:0xf bank_mask:0x3
    v_add_f32_dpp v10, v9, v9 row_ror:8 row_mask:0xf bank_mask:0xc
    v_add_f32_dpp v10, v10, v10 row_half_mirror row_mask:0xf bank_mask:0xf
    v_add_f32_dpp v10, v10, v10 quad_perm:[1,0,3,2] row_mask:0xf bank_mask:0xf
    v_add_f32_dpp v10, v10, v10 quad_perm:[2,3,0,1] row_mask:0xf bank_mask:0xf
    v_cvt_pk_bf16_f32 v10, v10, v10
    v_lshrrev_b32 v1, 3, v0
    v_lshlrev_b32 v1, 1, v1
    s_lshl_b32 s14, s2, 4
    s_mov_b32 exec_lo, 0x01010101
    s_mov_b32 exec_hi, 0x01010101
    buffer_store_short v10, v1, s[4:7], s14 offen
    ''')
    a.label('L_end2')
    a('s_endpgm')

    out = HEADER
    out += f'; @launch kernel={K1} grid=(256,1,1) block=(512,1,1) lds=10752\n'
    out += f'; @launch kernel={K2} grid=(256,1,1) block=(64,1,1) lds=0\n'
    out += '.amdgcn_target "amdgcn-amd-amdhsa--gfx950"\n.text\n'
    out += a.text()
    nv = (vEND + 7) // 8 * 8
    out += f'''.section .rodata,"a"
.p2align 6
.amdhsa_kernel {K1}
  .amdhsa_next_free_vgpr {nv}
  .amdhsa_next_free_sgpr 64
  .amdhsa_accum_offset {nv}
  .amdhsa_group_segment_fixed_size 0
  .amdhsa_kernarg_size 64
  .amdhsa_user_sgpr_count 2
  .amdhsa_user_sgpr_kernarg_segment_ptr 1
  .amdhsa_system_sgpr_workgroup_id_x 1
.end_amdhsa_kernel
.p2align 6
.amdhsa_kernel {K2}
  .amdhsa_next_free_vgpr 16
  .amdhsa_next_free_sgpr 24
  .amdhsa_accum_offset 16
  .amdhsa_group_segment_fixed_size 0
  .amdhsa_kernarg_size 64
  .amdhsa_user_sgpr_count 2
  .amdhsa_user_sgpr_kernarg_segment_ptr 1
  .amdhsa_system_sgpr_workgroup_id_x 1
.end_amdhsa_kernel
'''
    return out


if __name__ == '__main__':
    import argparse
    ap = argparse.ArgumentParser()
    ap.add_argument('--nb', type=int, default=8)
    ap.add_argument('--nt', type=int, default=1)
    ap.add_argument('-o', default=f'cdna_kernels/{NAME}.s')
    args = ap.parse_args()
    open(args.o, 'w').write(gen(NB=args.nb, nt=bool(args.nt)))
```

```python
import sys, math, struct
sys.path.insert(0, 'gen')
from asmdsl import Asm

NAME = 'standalone__mha_block_cached__decode'


def f32bits(x):
    return struct.unpack('<I', struct.pack('<f', x))[0]


HEADER = open('cdna_kernels/%s.s.ref' % NAME).read().split('; Override launch')[0]


def gen(NB=8, nt=True, fused=False, stamps=False, bar=0, kpol=None, vpol=None):
    NW = 8
    CH = 512 * 1024
    STEP = NW * NB * 1024
    NIT = CH // STEP
    assert NIT % 2 == 0
    C = (128 ** -0.5) * math.log2(math.e)
    NTS = ' nt' if nt else ''
    a = Asm()
    sX, sK, sV, sWQ, sWO, sOUT, sDBG, sWS = 4, 6, 8, 10, 12, 14, 16, 18
    rK, rV, rWQ, rWO, rX, rWS = 20, 24, 28, 32, 36, 40
    sW, sH, sB, sS, sT0, sT1, sC, sIT, sOFF, sOFF2, sHS = 44, 45, 46, 47, 48, 49, 50, 51, 52, 53, 54
    vL = 0
    vG, vCc = 1, 2
    vKV0, vKV1 = 3, 4
    vT0, vT1, vT2, vT3 = 5, 6, 7, 8
    vM, vLs, vAl, vNM = 9, 10, 11, 12
    vWOa = 13
    vQ = 16
    vACC = 20
    vSC = 28
    vPL = 36
    vPH = 44
    vXr = 28
    vXA, vXB = 36, 37
    vW = 52
    vKB = 120
    vVB = vKB + 2 * NB * 4
    vEND = vVB + 2 * NB * 4
    assert vEND <= 256, vEND

    def v(i, n=1):
        return f'v{i}' if n == 1 else f'v[{i}:{i + n - 1}]'

    def s(i, n=1):
        return f's{i}' if n == 1 else f's[{i}:{i + n - 1}]'

    def stamp(i):
        if stamps:
            a(f's_memrealtime s[{64 + 2 * i}:{65 + 2 * i}]')
            a('s_waitcnt lgkmcnt(0)')

    def dump_stamps(lo, hi, rs, vt, vz, st):
        if stamps:
            a('s_mov_b64 exec, 1')
            a(f'v_mov_b32 v{vz}, 0')
            a(f's_lshl_b32 s{st}, s2, 7')
            a(f's_add_u32 s{st}, s{st}, 0x400000')
            for i in range(lo, hi):
                a(f'v_mov_b32 v{vt}, s{64 + 2 * i}')
                a(f'v_mov_b32 v{vt + 1}, s{65 + 2 * i}')
                a(f'buffer_store_dwordx2 v[{vt}:{vt + 1}], v{vz}, s[{rs}:{rs + 3}], s{st} offen offset:{8 * i}')
                a('s_nop 1')

    K1 = 'attn_kernel'
    a.raw(f'.globl {K1}\n.p2align 8\n.type {K1},@function\n{K1}:')
    a(f'''
    s_cmp_ge_u32 s2, 256
    s_cbranch_scc1 L_end1
    ''')
    stamp(0)
    a(f'''
    s_load_dwordx16 s[4:19], s[0:1], 0
    v_lshrrev_b32 v{vT0}, 6, v0
    v_and_b32 v{vL}, 63, v0
    v_readfirstlane_b32 s{sW}, v{vT0}
    s_and_b32 s{sH}, s2, 7
    s_lshr_b32 s{sT0}, s2, 3
    s_lshr_b32 s{sT1}, s{sT0}, 3
    s_lshl_b32 s{sH}, s{sH}, 2
    s_add_u32 s{sH}, s{sH}, s{sT1}
    s_and_b32 s{sT0}, s{sT0}, 7
    s_lshr_b32 s{sB}, s{sT0}, 1
    s_and_b32 s{sS}, s{sT0}, 1
    s_mov_b32 s{sC}, {f32bits(C):#x}
    v_lshrrev_b32 v{vG}, 4, v{vL}
    v_and_b32 v{vCc}, 15, v{vL}
    ''')
    a(f'''
    s_lshl_b32 s{sT0}, s{sW}, 7
    v_lshlrev_b32 v{vT0}, 5, v{vG}
    v_add_u32 v{vT0}, s{sT0}, v{vT0}
    v_lshlrev_b32 v{vT1}, 12, v{vT0}
    v_lshlrev_b32 v{vT2}, 4, v{vCc}
    v_add_u32 v{vT1}, v{vT1}, v{vT2}
    ''')
    a(f'''
    s_mul_i32 s{sT0}, s{sW}, {NB * 1024}
    v_lshlrev_b32 v{vKV0}, 4, v{vL}
    v_add_u32 v{vKV0}, s{sT0}, v{vKV0}
    v_add_u32 v{vKV1}, 0x1000, v{vKV0}
    ''')
    a(f'''
    v_lshrrev_b32 v{vT2}, 3, v{vL}
    v_lshlrev_b32 v{vT2}, 14, v{vT2}
    v_and_b32 v{vT3}, 7, v{vL}
    v_lshlrev_b32 v{vT3}, 4, v{vT3}
    s_lshl_b32 s{sT0}, s{sW}, 7
    v_add3_u32 v{vWOa}, v{vT2}, v{vT3}, s{sT0}
    ''')
    a(f'''
    s_lshl_b32 s{sT0}, s{sB}, 5
    s_add_u32 s{sT0}, s{sT0}, s{sH}
    s_lshl_b32 s{sHS}, s{sT0}, 1
    s_add_u32 s{sHS}, s{sHS}, s{sS}
    s_lshl_b32 s{sT0}, s{sHS}, 19
    s_waitcnt lgkmcnt(0)
    ''')
    stamp(1)
    a(f'''
    s_lshl_b32 s{sT1}, s{sB}, 10
    s_add_u32 s{rX}, s{sX}, s{sT1}
    s_addc_u32 s{rX + 1}, s{sX + 1}, 0
    s_mov_b32 s{rX + 2}, 1024
    s_mov_b32 s{rX + 3}, 0x20000
    s_lshl_b32 s{sT1}, s{sH}, 8
    s_add_u32 s{rWQ}, s{sWQ}, s{sT1}
    s_addc_u32 s{rWQ + 1}, s{sWQ + 1}, 0
    s_sub_u32 s{rWQ + 2}, 0x400000, s{sT1}
    s_mov_b32 s{rWQ + 3}, 0x20000
    buffer_load_dwordx4 {v(vXr, 4)}, v{vT0}, {s(rX, 4)}, 0 offen
    buffer_load_dwordx4 {v(vXr + 4, 4)}, v{vT0}, {s(rX, 4)}, 0 offen offset:16
    s_mov_b32 s{sOFF}, 0
    ''')
    for i in range(16):
        a(f'buffer_load_dwordx4 {v(vW + 4 * i, 4)}, v{vT1}, {s(rWQ, 4)}, s{sOFF} offen')
        if i < 15:
            a(f's_add_u32 s{sOFF}, s{sOFF}, 0x2000')
    a(f'''
    s_add_u32 s{rK}, s{sK}, s{sT0}
    s_addc_u32 s{rK + 1}, s{sK + 1}, 0
    s_mov_b32 s{rK + 2}, {CH:#x}
    s_mov_b32 s{rK + 3}, 0x20000
    s_add_u32 s{rV}, s{sV}, s{sT0}
    s_addc_u32 s{rV + 1}, s{sV + 1}, 0
    s_mov_b32 s{rV + 2}, {CH:#x}
    s_mov_b32 s{rV + 3}, 0x20000
    s_lshl_b32 s{sT1}, s{sH}, 17
    s_add_u32 s{rWO}, s{sWO}, s{sT1}
    s_addc_u32 s{rWO + 1}, s{sWO + 1}, 0
    s_mov_b32 s{rWO + 2}, 0x20000
    s_mov_b32 s{rWO + 3}, 0x20000
    s_mov_b32 s{rWS}, s{sWS}
    s_mov_b32 s{rWS + 1}, s{sWS + 1}
    s_mov_b32 s{rWS + 2}, 0x800000
    s_mov_b32 s{rWS + 3}, 0x20000
    s_barrier
    ''')

    def issue(rsrc, vbuf, soff):
        pol = NTS
        if rsrc == rK and kpol is not None:
            pol = ' ' + kpol
        if rsrc == rV and vpol is not None:
            pol = ' ' + vpol
        for j in range(NB):
            vo = vKV0 if j < 4 else vKV1
            a(f'buffer_load_dwordx4 {v(vbuf + 4 * j, 4)}, v{vo}, {s(rsrc, 4)}, s{soff} offen offset:{(j & 3) * 1024}{pol}')

    a(f's_mov_b32 s{sOFF}, 0')
    a(f's_mov_b32 s{sOFF2}, {STEP}')
    issue(rK, vKB, sOFF)
    issue(rV, vVB, sOFF)
    issue(rK, vKB + 4 * NB, sOFF2)
    issue(rV, vVB + 4 * NB, sOFF2)
    for k in range(8):
        a(f'v_mov_b32 v{vACC + k}, 0')
    a(f's_waitcnt vmcnt({4 * NB})')
    stamp(2)
    for i in range(16):
        xr = vXr + i // 2
        xa, xb = vXA + 2 * (i & 1), vXB + 2 * (i & 1)
        if i & 1 == 0:
            a(f'v_and_b32 v{xa}, 0xffff, v{xr}')
            a(f'v_lshlrev_b32 v{xb}, 16, v{xr}')
        else:
            a(f'v_lshrrev_b32 v{xa}, 16, v{xr}')
            a(f'v_and_b32 v{xb}, 0xffff0000, v{xr}')
        for k in range(4):
            a(f'v_dot2c_f32_bf16 v{vACC + 2 * k}, v{vW + 4 * i + k}, v{xa}')
            a(f'v_dot2c_f32_bf16 v{vACC + 2 * k + 1}, v{vW + 4 * i + k}, v{xb}')
    for t in range(16):
        if t % 4 == 0:
            a(f's_mov_b32 s{sT0}, {t * 1024}')
        a(f'buffer_load_dwordx4 {v(vW + 4 * t, 4)}, v{vWOa}, {s(rWO, 4)}, s{sT0} offen offset:{(t & 3) * 1024}')

    def rows_reduce8(base):
        for k in range(4):
            a(f'v_permlane32_swap_b32 v{base + k}, v{base + k + 4}')
        for k in range(4):
            a(f'v_add_f32 v{base + k}, v{base + k}, v{base + k + 4}')
        for k in range(2):
            a(f'v_permlane16_swap_b32 v{base + k}, v{base + k + 2}')
        for k in range(2):
            a(f'v_add_f32 v{base + k}, v{base + k}, v{base + k + 2}')

    rows_reduce8(vACC)
    vLW, vLR, vPW, vPR = vT0, vT1, vT2, vT3
    a(f'''
    v_lshlrev_b32 v{vLW}, 5, v{vCc}
    v_lshl_add_u32 v{vLW}, v{vG}, 3, v{vLW}
    s_lshl_b32 s{sT0}, s{sW}, 9
    v_add_u32 v{vLW}, s{sT0}, v{vLW}
    v_lshlrev_b32 v{vLR}, 3, v{vL}
    s_lshl_b32 s{sT0}, s{sW}, 8
    s_add_u32 s{sT0}, s{sT0}, 8448
    v_lshlrev_b32 v{vPW}, 2, v{vL}
    v_add_u32 v{vPW}, s{sT0}, v{vPW}
    v_lshlrev_b32 v{vPR}, 4, v{vCc}
    v_add_u32 v{vPR}, s{sT0}, v{vPR}
    ds_write_b64 v{vLW}, {v(vACC, 2)}
    s_waitcnt lgkmcnt(0)
    s_barrier
    ''')
    for w in range(8):
        a(f'ds_read_b64 {v(vSC + 2 * w, 2)}, v{vLR} offset:{w * 512}')
    a('s_waitcnt lgkmcnt(0)')
    for st in (4, 2, 1):
        for w in range(st):
            for e in range(2):
                a(f'v_add_f32 v{vSC + 2 * w + e}, v{vSC + 2 * w + e}, v{vSC + 2 * (w + st) + e}')
    a(f'''
    v_cvt_pk_bf16_f32 v{vSC}, v{vSC}, v{vSC + 1}
    ds_write_b32 v{vPW}, v{vSC}
    s_waitcnt lgkmcnt(0)
    ds_read_b128 {v(vQ, 4)}, v{vPR}
    ''')
    for k in range(8):
        a(f'v_mov_b32 v{vACC + k}, 0')
    a(f'''
    v_mov_b32 v{vM}, 0xff800000
    v_mov_b32 v{vLs}, 0
    s_mov_b32 s{sIT}, 0
    s_mov_b32 s{sOFF}, {2 * STEP}
    s_waitcnt lgkmcnt(0)
    ''')

    stamp(3)
    def wait_vm(tag):
        a(f'''
        s_cmp_eq_u32 s{sIT}, 0
        s_cbranch_scc1 L_w1_{tag}
        s_waitcnt vmcnt({3 * NB})
        ''')
        a.label(f'L_w1_{tag}')
        a(f's_waitcnt vmcnt({3 * NB + 16})')

    def batch(buf, tag):
        kb = vKB + buf * 4 * NB
        vb = vVB + buf * 4 * NB
        wait_vm(tag + 'k')
        for j in range(NB):
            a(f'v_dot2_f32_bf16 v{vSC + j}, v{kb + 4 * j}, v{vQ}, 0')
        for k in range(1, 4):
            for j in range(NB):
                a(f'v_dot2c_f32_bf16 v{vSC + j}, v{kb + 4 * j + k}, v{vQ + k}')
        issue(rK, kb, sOFF)
        for r in (8, 4, 2, 1):
            for j in range(NB):
                a(f'v_add_f32_dpp v{vSC + j}, v{vSC + j}, v{vSC + j} row_ror:{r} row_mask:0xf bank_mask:0xf')
        vals = [vM] + [vSC + j for j in range(NB)]
        cur = vals[0]
        rest = vals[1:]
        first = True
        while rest:
            if len(rest) >= 2:
                a(f'v_max3_f32 v{vNM}, v{cur}, v{rest[0]}, v{rest[1]}')
                rest = rest[2:]
            else:
                a(f'v_max_f32 v{vNM}, v{cur}, v{rest[0]}')
                rest = rest[1:]
            cur = vNM
        a(f'''
        v_sub_f32 v{vAl}, v{vM}, v{vNM}
        v_mov_b32 v{vM}, v{vNM}
        v_mul_f32 v{vAl}, s{sC}, v{vAl}
        v_mul_f32 v{vNM}, s{sC}, v{vNM}
        v_exp_f32 v{vAl}, v{vAl}
        ''')
        for j in range(NB):
            a(f'v_fma_f32 v{vSC + j}, v{vSC + j}, s{sC}, -v{vNM}')
        for j in range(NB):
            a(f'v_exp_f32 v{vSC + j}, v{vSC + j}')
        a(f'v_mul_f32 v{vLs}, v{vLs}, v{vAl}')
        for k in range(8):
            a(f'v_mul_f32 v{vACC + k}, v{vACC + k}, v{vAl}')
        for j in range(NB):
            a(f'v_cvt_pk_bf16_f32 v{vPL + j}, v{vSC + j}, 0')
        for j in range(NB):
            a(f'v_lshlrev_b32 v{vPH + j}, 16, v{vPL + j}')
        for j in range(NB):
            a(f'v_add_f32 v{vLs}, v{vLs}, v{vSC + j}')
        wait_vm(tag + 'v')
        for j in range(NB):
            for k in range(4):
                a(f'v_dot2c_f32_bf16 v{vACC + 2 * k}, v{vb + 4 * j + k}, v{vPL + j}')
                a(f'v_dot2c_f32_bf16 v{vACC + 2 * k + 1}, v{vb + 4 * j + k}, v{vPH + j}')
        issue(rV, vb, sOFF)
        a(f's_add_u32 s{sOFF}, s{sOFF}, {STEP}')
        if bar == 2 or (bar == 1 and buf == 1):
            a('s_barrier')

    a.label('L_loop')
    batch(0, 'a')
    batch(1, 'b')
    a(f'''
    s_cmp_lg_u32 s{sIT}, 1
    s_cbranch_scc1 L_noperm
    s_mov_b32 s{sT0}, 0x05040100
    s_mov_b32 s{sT1}, 0x07060302
    ''')
    wmap = {}
    free = vW + 64
    for j in range(8):
        for k in range(4):
            A, B = vW + 8 * j + k, vW + 8 * j + 4 + k
            a(f'v_perm_b32 v{free}, v{B}, v{A}, s{sT0}')
            a(f'v_perm_b32 v{B}, v{B}, v{A}, s{sT1}')
            wmap[(j, 2 * k)] = free
            wmap[(j, 2 * k + 1)] = B
            free = A
    a.label('L_noperm')
    a(f'''
    s_add_u32 s{sIT}, s{sIT}, 1
    s_cmp_lt_u32 s{sIT}, {NIT // 2}
    s_cbranch_scc1 L_loop
    ''')
    stamp(4)
    t0, t1 = vSC, vSC + 1
    a(f'''
    v_mov_b32 v{t0}, v{vM}
    v_mov_b32 v{t1}, v{vM}
    v_permlane32_swap_b32 v{t0}, v{t1}
    v_max_f32 v{t0}, v{t0}, v{t1}
    v_mov_b32 v{t1}, v{t0}
    v_permlane16_swap_b32 v{t0}, v{t1}
    v_max_f32 v{vNM}, v{t0}, v{t1}
    v_sub_f32 v{vAl}, v{vM}, v{vNM}
    v_mul_f32 v{vAl}, s{sC}, v{vAl}
    v_exp_f32 v{vAl}, v{vAl}
    ''')
    a(f'v_mul_f32 v{vLs}, v{vLs}, v{vAl}')
    for k in range(8):
        a(f'v_mul_f32 v{vACC + k}, v{vACC + k}, v{vAl}')
    a(f'''
    v_mov_b32 v{t1}, v{vLs}
    v_permlane32_swap_b32 v{vLs}, v{t1}
    v_add_f32 v{vLs}, v{vLs}, v{t1}
    v_mov_b32 v{t1}, v{vLs}
    v_permlane16_swap_b32 v{vLs}, v{t1}
    v_add_f32 v{t1}, v{vLs}, v{t1}
    v_mov_b32 v{t0}, v{vNM}
    ''')
    rows_reduce8(vACC)
    a(f'''
    s_lshl_b32 s{sT0}, s{sW}, 3
    s_add_u32 s{sT0}, s{sT0}, 8192
    v_mov_b32 v{vAl}, s{sT0}
    ds_write_b64 v{vLW}, {v(vACC, 2)} offset:4096
    ds_write_b64 v{vAl}, {v(t0, 2)}
    v_mov_b32 v{vAl}, 0x2000
    s_waitcnt lgkmcnt(0)
    s_barrier
    s_waitcnt vmcnt(0)
    ''')
    stamp(5)
    vML = vKB
    vOP = vKB + 16
    for i in range(4):
        a(f'ds_read_b128 {v(vML + 4 * i, 4)}, v{vAl} offset:{16 * i}')
    for w in range(8):
        a(f'ds_read_b64 {v(vOP + 2 * w, 2)}, v{vLR} offset:{4096 + w * 512}')
    a('s_waitcnt lgkmcnt(8)')
    a(f'''
    v_max3_f32 v{vNM}, v{vML}, v{vML + 2}, v{vML + 4}
    v_max3_f32 v{vNM}, v{vNM}, v{vML + 6}, v{vML + 8}
    v_max3_f32 v{vNM}, v{vNM}, v{vML + 10}, v{vML + 12}
    v_max_f32 v{vNM}, v{vNM}, v{vML + 14}
    v_mul_f32 v{vM}, s{sC}, v{vNM}
    ''')
    for w in range(8):
        a(f'v_fma_f32 v{vML + 2 * w}, v{vML + 2 * w}, s{sC}, -v{vM}')
    for w in range(8):
        a(f'v_exp_f32 v{vML + 2 * w}, v{vML + 2 * w}')
    a(f'v_mul_f32 v{vLs}, v{vML}, v{vML + 1}')
    for w in range(1, 8):
        a(f'v_fmac_f32 v{vLs}, v{vML + 2 * w}, v{vML + 2 * w + 1}')
    a('s_waitcnt lgkmcnt(0)')
    a(f'v_mul_f32 v{t0}, v{vML}, v{vOP}')
    a(f'v_mul_f32 v{t1}, v{vML}, v{vOP + 1}')
    for w in range(1, 8):
        a(f'v_fmac_f32 v{t0}, v{vML + 2 * w}, v{vOP + 2 * w}')
        a(f'v_fmac_f32 v{t1}, v{vML + 2 * w}, v{vOP + 2 * w + 1}')
    vOB = vKB + 32
    a(f'''
    v_cvt_pk_bf16_f32 v{t0}, v{t0}, v{t1}
    ds_write_b32 v{vPW}, v{t0}
    v_lshrrev_b32 v{vAl}, 3, v{vL}
    v_lshlrev_b32 v{vAl}, 5, v{vAl}
    s_lshl_b32 s{sT0}, s{sW}, 8
    s_add_u32 s{sT0}, s{sT0}, 8448
    v_add_u32 v{vAl}, s{sT0}, v{vAl}
    s_waitcnt lgkmcnt(0)
    ds_read_b128 {v(vOB, 4)}, v{vAl}
    ds_read_b128 {v(vOB + 4, 4)}, v{vAl} offset:16
    s_waitcnt lgkmcnt(0)
    ''')
    vY = vACC
    for n in range(8):
        a(f'v_dot2_f32_bf16 v{vY + n}, v{wmap[(0, n)]}, v{vOB}, 0')
    for j in range(1, 8):
        for n in range(8):
            a(f'v_dot2c_f32_bf16 v{vY + n}, v{wmap[(j, n)]}, v{vOB + j}')
    for k in range(4):
        a(f'v_permlane32_swap_b32 v{vY + k}, v{vY + k + 4}')
    for k in range(4):
        a(f'v_add_f32 v{vY + k}, v{vY + k}, v{vY + k + 4}')
    for k in range(4):
        a(f'v_mov_b32 v{vY + 4 + k}, v{vY + k}')
    for k in range(4):
        a(f'v_permlane16_swap_b32 v{vY + k}, v{vY + k + 4}')
    for k in range(4):
        a(f'v_add_f32 v{vY + k}, v{vY + k}, v{vY + k + 4}')
    for k in range(4):
        a(f'v_add_f32_dpp v{vY + k}, v{vY + k}, v{vY + k} row_ror:8 row_mask:0xf bank_mask:0xf')
    a(f'''
    v_and_b32 v{t0}, 7, v{vL}
    v_lshlrev_b32 v{t0}, 5, v{t0}
    v_lshrrev_b32 v{t1}, 5, v{vL}
    v_lshl_add_u32 v{t0}, v{t1}, 4, v{t0}
    s_lshl_b32 s{sT0}, s{sHS}, 11
    s_lshl_b32 s{sT1}, s{sW}, 8
    s_add_u32 s{sT0}, s{sT0}, s{sT1}
    s_mov_b32 exec_lo, 0xff
    s_mov_b32 exec_hi, 0xff
    buffer_store_dwordx4 {v(vY, 4)}, v{t0}, {s(rWS, 4)}, s{sT0} offen
    s_cmp_lg_u32 s{sW}, 0
    s_cbranch_scc1 L_end1
    s_mov_b64 exec, 1
    v_mov_b32 v{t0}, v{vM}
    v_mov_b32 v{t1}, v{vLs}
    v_mov_b32 v{vAl}, 0
    s_lshl_b32 s{sT0}, s{sHS}, 3
    s_add_u32 s{sT0}, s{sT0}, 0x80000
    buffer_store_dwordx2 {v(t0, 2)}, v{vAl}, {s(rWS, 4)}, s{sT0} offen
    ''')
    stamp(6)
    dump_stamps(0, 7, rWS, t0, vAl, sT0)
    a.label('L_end1')
    a('s_endpgm')

    K2 = 'final_kernel'
    a.raw(f'.globl {K2}\n.p2align 8\n.type {K2},@function\n{K2}:')
    a.hist = []
    a(f'''
    s_cmp_ge_u32 s2, 256
    s_cbranch_scc1 L_end2
    ''')
    stamp(7)
    a(f'''
    s_load_dwordx2 s[4:5], s[0:1], 40
    s_load_dwordx2 s[8:9], s[0:1], 56
    s_lshr_b32 s12, s2, 6
    s_and_b32 s13, s2, 63
    v_lshlrev_b32 v1, 11, v0
    v_lshlrev_b32 v2, 3, v0
    s_lshl_b32 s14, s12, 17
    s_lshl_b32 s15, s13, 5
    s_add_u32 s14, s14, s15
    s_lshl_b32 s15, s12, 9
    s_add_u32 s15, s15, 0x80000
    s_mov_b32 s6, 4096
    s_mov_b32 s7, 0x20000
    s_mov_b32 s10, 0x800000
    s_mov_b32 s11, 0x20000
    s_waitcnt lgkmcnt(0)
    buffer_load_dwordx2 v[4:5], v2, s[8:11], s15 offen
    buffer_load_dwordx4 v[8:11], v1, s[8:11], s14 offen
    buffer_load_dwordx4 v[12:15], v1, s[8:11], s14 offen offset:16
    s_waitcnt vmcnt(2)
    v_max_f32_dpp v6, v4, v4 quad_perm:[1,0,3,2] row_mask:0xf bank_mask:0xf
    v_sub_f32 v6, v4, v6
    v_exp_f32 v6, v6
    v_mul_f32 v5, v5, v6
    v_add_f32_dpp v7, v5, v5 quad_perm:[1,0,3,2] row_mask:0xf bank_mask:0xf
    v_rcp_f32 v7, v7
    v_mul_f32 v6, v6, v7
    s_waitcnt vmcnt(0)
    ''')
    for k in range(8):
        a(f'v_mul_f32 v{8 + k}, v{8 + k}, v6')
    for k in range(4):
        a(f'v_permlane32_swap_b32 v{8 + k}, v{12 + k}')
    for k in range(4):
        a(f'v_add_f32 v{8 + k}, v{8 + k}, v{12 + k}')
    for k in range(2):
        a(f'v_permlane16_swap_b32 v{8 + k}, v{10 + k}')
    for k in range(2):
        a(f'v_add_f32 v{8 + k}, v{8 + k}, v{10 + k}')
    a(f'''
    v_add_f32_dpp v10, v8, v8 row_ror:8 row_mask:0xf bank_mask:0x3
    v_add_f32_dpp v10, v9, v9 row_ror:8 row_mask:0xf bank_mask:0xc
    v_add_f32_dpp v10, v10, v10 row_half_mirror row_mask:0xf bank_mask:0xf
    v_add_f32_dpp v10, v10, v10 quad_perm:[1,0,3,2] row_mask:0xf bank_mask:0xf
    v_add_f32_dpp v10, v10, v10 quad_perm:[2,3,0,1] row_mask:0xf bank_mask:0xf
    v_cvt_pk_bf16_f32 v10, v10, v10
    v_lshrrev_b32 v1, 3, v0
    v_lshlrev_b32 v1, 1, v1
    s_lshl_b32 s14, s2, 4
    s_mov_b32 exec_lo, 0x01010101
    s_mov_b32 exec_hi, 0x01010101
    buffer_store_short v10, v1, s[4:7], s14 offen
    ''')
    stamp(8)
    dump_stamps(7, 9, 8, 12, 14, 14)
    a.label('L_end2')
    a('s_endpgm')

    out = HEADER
    out += f'; @launch kernel={K1} grid=(256,1,1) block=(512,1,1) lds=10752\n'
    out += f'; @launch kernel={K2} grid=(256,1,1) block=(64,1,1) lds=0\n'
    out += '.amdgcn_target "amdgcn-amd-amdhsa--gfx950"\n.text\n'
    out += a.text()
    nv = (vEND + 7) // 8 * 8
    out += f'''.section .rodata,"a"
.p2align 6
.amdhsa_kernel {K1}
  .amdhsa_next_free_vgpr {nv}
  .amdhsa_next_free_sgpr 96
  .amdhsa_accum_offset {nv}
  .amdhsa_group_segment_fixed_size 0
  .amdhsa_kernarg_size 64
  .amdhsa_user_sgpr_count 2
  .amdhsa_user_sgpr_kernarg_segment_ptr 1
  .amdhsa_system_sgpr_workgroup_id_x 1
.end_amdhsa_kernel
.p2align 6
.amdhsa_kernel {K2}
  .amdhsa_next_free_vgpr 16
  .amdhsa_next_free_sgpr 96
  .amdhsa_accum_offset 16
  .amdhsa_group_segment_fixed_size 0
  .amdhsa_kernarg_size 64
  .amdhsa_user_sgpr_count 2
  .amdhsa_user_sgpr_kernarg_segment_ptr 1
  .amdhsa_system_sgpr_workgroup_id_x 1
.end_amdhsa_kernel
'''
    return out


if __name__ == '__main__':
    import argparse
    ap = argparse.ArgumentParser()
    ap.add_argument('--nb', type=int, default=8)
    ap.add_argument('--nt', type=int, default=1)
    ap.add_argument('--stamps', type=int, default=0)
    ap.add_argument('--bar', type=int, default=0)
    ap.add_argument('--kpol', default=None)
    ap.add_argument('--vpol', default=None)
    ap.add_argument('-o', default=f'cdna_kernels/{NAME}.s')
    args = ap.parse_args()
    open(args.o, 'w').write(gen(NB=args.nb, nt=bool(args.nt), stamps=bool(args.stamps), bar=args.bar, kpol=args.kpol, vpol=args.vpol))
```
